```python
import torch

def _softmax(x, axis=-1):
    return torch.softmax(x, dim=axis)

def _gelu(x):
    return torch.nn.functional.gelu(x, approximate='tanh')

def _silu(x):
    return torch.nn.functional.silu(x)

def _sigmoid(x):
    return torch.sigmoid(x)

def _layernorm(x, axis=-1, eps=1e-05):
    m = x.mean(dim=axis, keepdim=True)
    v = x.var(dim=axis, keepdim=True, unbiased=False)
    return (x - m) / torch.sqrt(v + eps)

def _scatter_add(tgt, idx, src, axis=0):
    return tgt.clone().index_add_(axis, idx, src)

def _segment_sum(src, seg, n):
    out = torch.zeros((n,) + src.shape[1:], dtype=src.dtype)
    return out.index_add_(0, seg, src)

def _pad(x, pw):
    flat = tuple((v for pair in reversed(pw) for v in pair))
    return torch.nn.functional.pad(x, flat)
kernel_name = 'adaLN_cond__spectral_fnet__geglu_ffn__prompt'

def setup_inputs():

    _w = lambda a: (lambda t: t.to(torch.bfloat16) if t.is_floating_point() else t)(torch.as_tensor(a))

    def _A_setup():
        B, S, D = (1, 2048, 640)
        ns = torch.arange(S)[:, None] * torch.arange(S)[None, :]
        nd = torch.arange(D)[:, None] * torch.arange(D)[None, :]
        Ws_re = torch.cos(-2.0 * torch.pi * ns / S).to(float)
        Ws_im = torch.sin(-2.0 * torch.pi * ns / S).to(float)
        Wd_re = torch.cos(-2.0 * torch.pi * nd / D).to(float)
        Wd_im = torch.sin(-2.0 * torch.pi * nd / D).to(float)
        return {'x': _w((lambda *s: torch.randn(*s, dtype=torch.bfloat16) * 0.05)(B, S, D)), 'dft_seq_re': _w(Ws_re), 'dft_seq_im': _w(Ws_im), 'dft_hid_re': _w(Wd_re), 'dft_hid_im': _w(Wd_im)}
    _A_in = _A_setup()

    def _B_setup():
        B, S, D, F = (1, 2048, 640, 1536)
        return {'x': _w((lambda *s: torch.randn(*s, dtype=torch.bfloat16) * 0.05)(B, S, D)), 'w_gate': _w((lambda *s: torch.randn(*s, dtype=torch.bfloat16) * 0.4)(D, F)), 'w_up': _w((lambda *s: torch.randn(*s, dtype=torch.bfloat16) * 0.4)(D, F)), 'w_down': _w((lambda *s: torch.randn(*s, dtype=torch.bfloat16) * 0.4)(F, D))}
    _B_in = _B_setup()
    return {'A_x': _A_in['x'], 'A_dft_seq_re': _A_in['dft_seq_re'], 'A_dft_seq_im': _A_in['dft_seq_im'], 'A_dft_hid_re': _A_in['dft_hid_re'], 'A_dft_hid_im': _A_in['dft_hid_im'], 'B_x': _B_in['x'], 'B_w_gate': _B_in['w_gate'], 'B_w_up': _B_in['w_up'], 'B_w_down': _B_in['w_down'], 'c': _w((lambda *s: torch.randn(*s, dtype=torch.bfloat16) * 0.4)(1, 640) * 8.0), 'w_mod': _w((lambda *s: torch.randn(*s, dtype=torch.bfloat16) * 0.4)(640, 6 * 640) * 640 ** (-0.5) * 8.0)}

def reference(A_x, A_dft_seq_re, A_dft_seq_im, A_dft_hid_re, A_dft_hid_im, B_x, B_w_gate, B_w_up, B_w_down, c, w_mod):

    def _A_ref(x, dft_seq_re, dft_seq_im, dft_hid_re, dft_hid_im):
        a = torch.einsum('bsd,ed->bse', x, dft_hid_re)
        b = torch.einsum('bsd,ed->bse', x, dft_hid_im)
        y = torch.einsum('ts,bse->bte', dft_seq_re, a) - torch.einsum('ts,bse->bte', dft_seq_im, b)
        return y

    def _B_ref(x, w_gate, w_up, w_down):
        return _gelu(x @ w_gate) * (x @ w_up) @ w_down
    x = A_x
    mod = (_silu(c) @ w_mod).reshape(c.shape[0], 6, 1, -1)
    sa, ca, ga, sb, cb, gb = (mod[:, 0].clone(), mod[:, 1].clone(), mod[:, 2].clone(), mod[:, 3].clone(), mod[:, 4].clone(), mod[:, 5].clone())
    h = _layernorm(x, axis=-1) * (1 + ca) + sa
    x = x + ga * _A_ref(h, A_dft_seq_re, A_dft_seq_im, A_dft_hid_re, A_dft_hid_im)
    h = _layernorm(x, axis=-1) * (1 + cb) + sb
    x = x + gb * _B_ref(h, B_w_gate, B_w_up, B_w_down)
    return x
```

```python
import re

class Asm:
    def __init__(self):
        self.L = []
    def __call__(self, s=""):
        for x in s.split("\n"):
            x = x.strip()
            if x: self.L.append(x)
    def c(self, s):
        self.L.append("; " + s)
    def text(self):
        out = []
        for x in self.L:
            out.append(x if (x.endswith(":") or x.startswith(";") or x.startswith(".")) else "    " + x)
        return "\n".join(out) + "\n"

def vr(b, n=1, t="v"):
    return f"{t}{b}" if n == 1 else f"{t}[{b}:{b+n-1}]"
def ar(b, n=1): return vr(b, n, "a")
def sr(b, n=1): return vr(b, n, "s")

_REG = re.compile(r"\b([vas])(?:(\d+)|\[(\d+):(\d+)\])")
TRANS = ("v_exp_", "v_log_", "v_rcp_", "v_rsq_", "v_sqrt_", "v_sin_", "v_cos_")

def regs_of(tok):
    r = set()
    for m in _REG.finditer(tok):
        t = m.group(1)
        if m.group(2) is not None: r.add((t, int(m.group(2))))
        else:
            for i in range(int(m.group(3)), int(m.group(4)) + 1): r.add((t, i))
    if re.search(r"\bvcc\b", tok): r |= {("s", 106), ("s", 107)}
    if re.search(r"\bvcc_lo\b", tok): r.add(("s", 106))
    if re.search(r"\bvcc_hi\b", tok): r.add(("s", 107))
    if re.search(r"\bm0\b", tok): r.add(("s", 124))
    if re.search(r"\bexec(_lo|_hi)?\b", tok): r |= {("s", 126), ("s", 127)}
    return r

class Ins:
    def __init__(self, line):
        self.line = line
        code = line.split(";")[0].strip()
        parts = code.split(None, 1)
        self.op = parts[0]
        rest = parts[1] if len(parts) > 1 else ""
        self.ops = [o.strip() for o in rest.split(",")] if rest else []
        op = self.op
        self.mfma = op.startswith("v_mfma")
        self.valu = op.startswith("v_") and not self.mfma
        self.trans = op.startswith(TRANS)
        self.vmem = op.startswith(("buffer_", "global_", "flat_"))
        self.ds = op.startswith("ds_")
        self.salu = op.startswith("s_")
        self.dpp = "_dpp" in op or "row_" in rest or "quad_perm" in rest
        self.permlane = op.startswith("v_permlane")
        self.rdlane = op.startswith(("v_readlane", "v_readfirstlane"))
        self.lds_dma = self.vmem and (re.search(r"\blds\b", rest) is not None or "load_lds" in op)
        self.w = set(); self.r = set(); self.srcc = set(); self.ab = set(); self.sdata = set()
        R = [regs_of(o) for o in self.ops]
        allr = set().union(*R) if R else set()
        if self.mfma:
            self.passes = 8 if "32x32" in op else 4
            self.w = R[0]; self.ab = R[1] | R[2]; self.srcc = R[3]; self.r = self.ab | self.srcc
        elif self.valu:
            if op.startswith("v_cmp"):
                self.w = R[0]; self.r = set().union(*R[1:])
            elif re.match(r"v_(add|sub|subrev|addc|subb)_co_", op) or op.startswith("v_mad_u64"):
                self.w = R[0] | R[1]; self.r = set().union(*R[2:])
            elif self.permlane and "swap" in op:
                self.w = R[0] | R[1]; self.r = R[0] | R[1]
            elif op == "v_nop":
                pass
            else:
                self.w = R[0]; self.r = set().union(*R[1:]) if len(R) > 1 else set()
                if op.startswith(("v_fmac", "v_dot2c", "v_pk_fmac", "v_writelane")) or self.dpp or "d16" in op or "sdwa" in op:
                    self.r |= R[0]
                if op.startswith("v_cndmask") and len(self.ops) == 3: self.r |= {("s",106),("s",107)}
        elif self.vmem:
            if op in ("buffer_inv", "buffer_wbl2"): pass
            elif "store" in op or "atomic" in op:
                self.r = allr
                self.sdata = R[0] if op.startswith("buffer_") else R[1]
                if "atomic" in op and "sc0" in rest: self.w = R[0]
                self.wide = bool(re.search(r"dwordx[34]", op))
            elif self.lds_dma:
                self.r = allr | {("s", 124)}
            else:
                self.w = R[0]; self.r = set().union(*R[1:])
        elif self.ds:
            if op.startswith(("ds_read", "ds_bpermute", "ds_permute", "ds_swizzle")):
                self.w = R[0]; self.r = set().union(*R[1:]) if len(R) > 1 else set()
            else:
                self.r = allr
            if "addtid" in op: self.r |= {("s", 124)}
        elif self.salu:
            if op.startswith(("s_cmp", "s_cbranch", "s_branch", "s_waitcnt", "s_barrier", "s_nop", "s_endpgm", "s_sleep", "s_setprio", "s_bitcmp", "s_setpc")):
                self.r = allr
            else:
                self.w = R[0] if R else set(); self.r = set().union(*R[1:]) if len(R) > 1 else set()
                if "saveexec" in op: self.w = self.w | {("s",126),("s",127)}
        self.dotab = (R[1] | R[2]) if op.startswith("v_dot") else set()
        self.states = 1
        if op == "s_nop": self.states = int(self.ops[0], 0) + 1
    def vw(self): return {x for x in self.w if x[0] in "va"}
    def sw(self): return {x for x in self.w if x[0] == "s"}

def need(p, c):
    n = 0
    pv = p.vw(); ps = p.sw()
    if p.valu:
        if c.mfma and pv & c.r: n = max(n, 2)
        if c.valu and c.dpp and pv & c.r: n = max(n, 2)
        if c.permlane and pv & c.r: n = max(n, 2)
        if c.rdlane and pv & c.r: n = max(n, 1)
        if p.trans and c.valu and not c.trans and pv & c.r: n = max(n, 1)
        if ("sdwa" in p.op or "op_sel:" in p.line) and c.valu and pv & (c.r | c.w): n = max(n, 1)
        if ps:
            if c.vmem and ps & c.r: n = max(n, 5)
            if c.valu and ps & c.r: n = max(n, 4 if c.op.startswith(("v_readlane", "v_writelane")) else 2)
            if c.mfma and ps & {("s",126),("s",127)}: n = max(n, 4)
    if p.op.startswith("v_dot") and (c.valu or c.mfma or c.vmem or c.ds):
        if pv & (c.r | c.w):
            same = c.op == p.op and not (pv & c.dotab)
            if not same: n = max(n, 3)
    if p.mfma:
        big = p.passes == 8
        if c.mfma:
            if p.w & c.ab: n = max(n, 12 if big else 8)
            elif p.w & c.srcc and not (p.w == c.srcc and p.passes == c.passes): n = max(n, 10 if big else 6)
            elif p.w & c.w and not (p.w == c.srcc): n = max(n, 10 if big else 6)
        elif c.valu or c.vmem or c.ds:
            if p.w & (c.r | c.w): n = max(n, 12 if big else 8)
        if c.valu and p.srcc & c.vw(): n = max(n, 7 if big else 3)
    if p.salu and ("s", 124) in p.w and (c.lds_dma or (c.ds and "addtid" in c.op)): n = max(n, 1)
    if p.vmem and p.sdata and getattr(p, "wide", False):
        if c.valu and p.sdata & c.vw(): n = max(n, 2)
        elif p.sdata & c.vw(): n = max(n, 1)
    return n

def is_ins(x):
    return x and not x.startswith((";", ".")) and not x.endswith(":")

WIN = 14
def fix_hazards(lines, verbose=False):
    out = []; hist = []
    nins = 0
    for x in lines:
        if not is_ins(x):
            out.append(x); continue
        c = Ins(x)
        dist = 0; pad = 0
        for p in reversed(hist[-WIN:]):
            n = need(p, c)
            if n > dist: pad = max(pad, n - dist)
            dist += p.states
            if dist >= 13: break
        if pad:
            nins += 1
            nop = f"s_nop {pad-1}"
            out.append(nop); hist.append(Ins(nop))
            if verbose: print("pad", pad, "before", x)
        out.append(x); hist.append(c)
        if c.op in ("s_endpgm", "s_branch", "s_setpc_b64"): hist = []
    labels = {x[:-1]: i for i, x in enumerate(out) if x.endswith(":")}
    errs = []
    for i, x in enumerate(out):
        if is_ins(x) and x.split()[0].startswith(("s_cbranch", "s_branch")):
            tgt = x.split(";")[0].split()[1]
            if tgt not in labels: continue
            pre = [Ins(y) for y in out[max(0, i-40):i+1] if is_ins(y)][-WIN:]
            post = [Ins(y) for y in out[labels[tgt]:labels[tgt]+40] if is_ins(y)][:WIN]
            for k, c in enumerate(post):
                d0 = sum(q.states for q in post[:k])
                dist = d0
                for p in reversed(pre):
                    if need(p, c) > dist: errs.append(f"edge hazard {p.line} -> {c.line} via {x}")
                    dist += p.states
                    if dist >= 13: break
                if c.op in ("s_endpgm", "s_branch"): break
    if errs:
        raise RuntimeError("\n".join(errs))
    return out, nins

def kd(name, vgpr, agpr=0, sgpr=102):
    acc = (vgpr + 3)//4*4
    nfv = acc + agpr if agpr else vgpr
    return f""".p2align 6
.amdhsa_kernel {name}
.amdhsa_next_free_vgpr {nfv}
.amdhsa_next_free_sgpr {sgpr}
.amdhsa_accum_offset {acc}
.amdhsa_group_segment_fixed_size 0
.amdhsa_kernarg_size 112
.amdhsa_user_sgpr_count 2
.amdhsa_user_sgpr_kernarg_segment_ptr 1
.amdhsa_system_sgpr_workgroup_id_x 1
.end_amdhsa_kernel"""
```

```python
from asmlib import *
from layout import *
import struct
def f2u(x): return "0x%08x" % struct.unpack("<I", struct.pack("<f", x))[0]

NA, NG, NPG, NPD = 128, 60, 240, 120
K1_GRID = NA + NG + NPG + NPD
K1_LDS = 21504

def srd(A, d, base, nbytes):
    A(f"s_mov_b32 s{d}, s{base}\ns_mov_b32 s{d+1}, s{base+1}\ns_mov_b32 s{d+2}, {hex(nbytes)}\ns_mov_b32 s{d+3}, 0x20000")

def divmod_const(A, q, r, x, n):
    m = -(-(1 << 32)//n)
    A(f"s_mul_hi_u32 s{q}, s{x}, {hex(m)}\ns_mul_i32 s{r}, s{q}, {n}\ns_sub_u32 s{r}, s{x}, s{r}")

def gen_k1(A, name="k1_kernel", stamps=False):
    A(f".globl {name}\n.p2align 8\n.type {name},@function\n{name}:")
    if stamps: A("s_memrealtime s[60:61]")
    A(f"s_cmp_ge_u32 s2, {K1_GRID}\ns_cbranch_scc1 K1_end")
    A(f"s_load_dwordx2 s[4:5], s[0:1], {KA_X}\ns_load_dwordx8 s[24:31], s[0:1], {KA_WG}")
    A(f"s_load_dwordx2 s[6:7], s[0:1], {KA_WM}\ns_load_dwordx2 s[20:21], s[0:1], {KA_WS}")
    A("v_lshrrev_b32 v1, 6, v0\nv_and_b32 v2, 63, v0")
    A("v_readfirstlane_b32 s3, v1")
    A(f"s_cmp_ge_u32 s2, {NA+NG}\ns_cbranch_scc1 K1_pack")
    A(f"s_cmp_ge_u32 s2, {NA}\ns_cbranch_scc1 K1_gemv")
    A.c("role A: LN1 statistics + 64-point real DFT over rows s = 32*s1 + s2, 160 columns")
    A("s_and_b32 s32, s2, 31\ns_lshr_b32 s33, s2, 5")
    A("v_and_b32 v3, 15, v2\nv_lshrrev_b32 v4, 4, v2")
    A("v_lshl_add_u32 v5, v1, 4, v4")
    A("s_mov_b32 s34, 40960\nv_mul_lo_u32 v5, v5, s34")
    A("s_mul_i32 s35, s33, 20\nv_add_u32 v6, s35, v3")
    for jj in range(5):
        A(f"v_add_u32 v7, {16*jj}, v6\nv_subrev_u32 v8, 80, v7\nv_min_u32 v7, v7, v8\nv_lshl_add_u32 v{10+jj}, v7, 4, v5")
    A("s_mul_i32 s36, s32, 1280")
    for i in range(1, 4): A(f"s_add_u32 s{36+i}, s36, {163840*i}")
    A("s_waitcnt lgkmcnt(0)")
    srd(A, 8, 4, S*D*2)
    srd(A, 16, 20, WS_END)
    X = 16
    for i in range(4):
        for jj in range(5):
            A(f"buffer_load_dwordx4 {vr(X+20*i+4*jj,4)}, v{10+jj}, s[8:11], s{36+i} offen")
    M = 100
    A("v_lshrrev_b32 v6, 1, v3\nv_lshl_add_u32 v6, v1, 3, v6")
    A("v_and_b32 v7, 1, v3")
    A("v_cmp_eq_u32 vcc, 0, v6\nv_lshlrev_b32 v8, 5, v7")
    A("v_cndmask_b32 v8, v6, v8, vcc")
    A("v_cvt_f32_u32 v9, v7\nv_mul_f32 v9, 0x3e800000, v9")
    A("v_cndmask_b32 v9, v9, 0, vcc")
    A("v_cvt_f32_u32 v8, v8\nv_mul_f32 v8, 0x3c800000, v8")
    A("v_cvt_f32_u32 v15, v4\nv_mul_f32 v15, 0x41000000, v15\nv_fma_f32 v9, v15, v8, v9")
    for j in range(2):
        for jj in range(8):
            r = M + 8*j + jj
            A(f"v_fmamk_f32 v{r}, v8, {f2u(32.0*j+jj)}, v9")
    for r in range(M, M+16): A(f"v_cos_f32 v{r}, v{r}")
    A("s_mov_b32 s34, 81920\nv_mul_lo_u32 v116, v6, s34\nv_lshl_add_u32 v116, v7, 6, v116")
    A("s_and_b32 s40, s32, 2\ns_lshl_b32 s40, s40, 4\nv_lshlrev_b32 v6, 4, v4\nv_xor_b32 v6, s40, v6\nv_add_u32 v116, v116, v6")
    A(f"s_mul_i32 s41, s33, 20480\ns_lshl_b32 s42, s32, 7\ns_add_u32 s41, s41, s42\ns_add_u32 s41, s41, {WS_V}")
    A("v_lshl_add_u32 v5, v1, 4, v4\nv_mul_u32_u24 v5, 320, v5\nv_lshl_add_u32 v117, v3, 4, v5")
    A("v_bfe_u32 v5, v2, 2, 2\nv_lshl_add_u32 v5, v4, 3, v5\nv_mul_u32_u24 v5, 320, v5\nv_and_b32 v6, 3, v2\nv_lshl_add_u32 v118, v6, 4, v5")
    A("s_mov_b32 s43, 0x3f803f80\nv_mov_b32 v119, s43")
    A("s_mov_b32 s44, 0x000f000f\ns_mov_b32 s45, 0x000f000f")
    SUM, SQ = 120, 124
    for i in range(4):
        A(f"v_mov_b32 v{SUM+i}, 0\nv_mov_b32 v{SQ+i}, 0")
    for i in range(4):
        for jj in range(5):
            A(f"s_waitcnt vmcnt({19-(5*i+jj)})")
            b = X+20*i+4*jj
            if jj == 0: A(f"ds_write_b128 v117, {vr(b,4)} offset:{i*1280}")
            if jj == 1: A(f"s_mov_b64 exec, s[44:45]\nds_write_b128 v117, {vr(b,4)} offset:{i*1280+256}\ns_mov_b64 exec, -1")
            for k in range(4):
                A(f"v_dot2c_f32_bf16 v{SUM+i}, v{b+k}, v119\nv_dot2c_f32_bf16 v{SQ+i}, v{b+k}, v{b+k}")
    for rot in (8, 4, 2, 1):
        for r in list(range(SUM, SUM+4)) + list(range(SQ, SQ+4)):
            A(f"v_add_f32_dpp v{r}, v{r}, v{r} row_ror:{rot} row_mask:0xf bank_mask:0xf")
    A("v_cmp_eq_u32 s[46:47], 1, v3\nv_cmp_eq_u32 s[48:49], 2, v3\nv_cmp_eq_u32 s[50:51], 3, v3")
    for b in (SUM, SQ):
        A(f"v_cndmask_b32 v{b}, v{b}, v{b+1}, s[46:47]\nv_cndmask_b32 v{b}, v{b}, v{b+2}, s[48:49]\nv_cndmask_b32 v{b}, v{b}, v{b+3}, s[50:51]")
    inv = f2u(1.0/D)
    A(f"v_mul_f32 v{SUM}, {inv}, v{SUM}\nv_mul_f32 v{SQ}, {inv}, v{SQ}")
    A(f"v_fma_f32 v{SQ}, -v{SUM}, v{SUM}, v{SQ}\nv_max_f32 v{SQ}, 0, v{SQ}\nv_add_f32 v{SQ}, {f2u(1e-5)}, v{SQ}\nv_rsq_f32 v{SQ}, v{SQ}")
    A(f"v_sub_f32 v{SUM}, 0, v{SUM}\nv_cvt_pk_bf16_f32 v5, v{SUM}, v{SUM}\nv_lshlrev_b32 v6, 16, v5\nv_sub_f32 v6, v{SUM}, v6\nv_cvt_pk_bf16_f32 v6, v6, v6")
    A("v_lshl_add_u32 v7, v3, 2, v4\nv_lshl_add_u32 v7, v1, 4, v7\nv_lshlrev_b32 v8, 2, v7\nv_lshlrev_b32 v7, 1, v7")
    RB, NH, NL = 20480, 20736, 20864
    A("s_mov_b64 exec, s[44:45]")
    A(f"ds_write_b32 v8, v{SQ} offset:{RB}\nds_write_b16 v7, v5 offset:{NH}\nds_write_b16 v7, v6 offset:{NL}")
    A("s_mov_b64 exec, -1")
    A("v_lshlrev_b32 v8, 5, v4\nv_lshlrev_b32 v7, 4, v4")
    A("s_waitcnt lgkmcnt(0)\ns_barrier")
    RV = 16
    NHv, NLv = 32, 40
    for j in range(2):
        A(f"ds_read_b128 {vr(RV+8*j,4)}, v8 offset:{RB+128*j}\nds_read_b128 {vr(RV+8*j+4,4)}, v8 offset:{RB+128*j+16}")
    for j in range(2):
        A(f"ds_read_b128 {vr(NHv+4*j,4)}, v7 offset:{NH+64*j}\nds_read_b128 {vr(NLv+4*j,4)}, v7 offset:{NL+64*j}")
    FA = 48
    def trreads(T, slot):
        P, Tp = divmod(T, 2)
        for j in range(2):
            for h in range(2):
                A(f"ds_read_b64_tr_b16 {vr(FA+8*slot+4*j+2*h,2)}, v118 offset:{j*10240+h*1280+P*64+Tp*8}")
    for T in range(2): trreads(T, T)
    A("s_waitcnt lgkmcnt(12)")
    for k in range(16): A(f"v_mul_f32 v{M+k}, v{M+k}, v{RV+k}")
    B = 120
    for k in range(8): A(f"v_cvt_pk_bf16_f32 v{B+k}, v{M+2*k}, v{M+2*k+1}")
    A("s_waitcnt lgkmcnt(8)")
    CI = 16
    A(f"v_mfma_f32_16x16x32_bf16 {vr(CI,4)}, {vr(NHv,4)}, {vr(B,4)}, 0")
    A(f"v_mfma_f32_16x16x32_bf16 {vr(CI,4)}, {vr(NHv+4,4)}, {vr(B+4,4)}, {vr(CI,4)}")
    A(f"v_mfma_f32_16x16x32_bf16 {vr(CI,4)}, {vr(NLv,4)}, {vr(B,4)}, {vr(CI,4)}")
    A(f"v_mfma_f32_16x16x32_bf16 {vr(CI,4)}, {vr(NLv+4,4)}, {vr(B+4,4)}, {vr(CI,4)}")
    for P in range(5):
        if P < 4:
            for T in (2*P+2, 2*P+3): trreads(T, T % 6)
            A("s_waitcnt lgkmcnt(8)")
        else:
            A("s_waitcnt lgkmcnt(0)")
        ac = M + 8*(P & 1)
        for t in range(2):
            sl = (2*P+t) % 6
            A(f"v_mfma_f32_16x16x32_bf16 {vr(ac+4*t,4)}, {vr(FA+8*sl,4)}, {vr(B,4)}, {vr(CI,4)}")
        for t in range(2):
            sl = (2*P+t) % 6
            A(f"v_mfma_f32_16x16x32_bf16 {vr(ac+4*t,4)}, {vr(FA+8*sl+4,4)}, {vr(B+4,4)}, {vr(ac+4*t,4)}")
        def out(Pp):
            a0 = M + 8*(Pp & 1); o = 20 + 4*(Pp & 1)
            for k in range(4): A(f"v_cvt_pk_bf16_f32 v{o+k}, v{a0+2*k}, v{a0+2*k+1}")
            A(f"buffer_store_dwordx4 {vr(o,4)}, v116, s[16:19], s41 offen\ns_add_u32 s41, s41, 4096")
        if P > 0: out(P-1)
        if P == 4: out(4)
    A("s_branch K1_fin")
    A("K1_gemv:")
    A.c("role G: mod = silu(c) @ w_mod, 64 columns")
    A(f"s_sub_u32 s32, s2, {NA}")
    A("v_lshrrev_b32 v3, 3, v0\nv_and_b32 v4, 7, v0")
    A("s_mov_b32 s34, 153600\nv_mul_lo_u32 v5, v3, s34\nv_lshl_add_u32 v5, v4, 4, v5")
    A("v_mul_u32_u24 v6, 40, v3")
    A("s_lshl_b32 s36, s32, 7")
    A("s_waitcnt lgkmcnt(0)")
    srd(A, 8, 6, 640*3840*2)
    srd(A, 12, 30, 640*2)
    srd(A, 16, 20, WS_END)
    C = 100
    for i in range(5): A(f"buffer_load_dwordx2 {vr(C+2*i,2)}, v6, s[12:15], 0 offen offset:{8*i}")
    for i in range(20):
        A(f"buffer_load_dwordx4 {vr(X+4*i,4)}, v5, s[8:11], s36 offen\ns_add_u32 s36, s36, 7680")
    A("s_cmp_lg_u32 s32, 0\ns_cbranch_scc1 K1_g1")
    A(f"v_mov_b32 v8, 0\nv_mov_b32 v9, 0\nv_mov_b32 v10, 0\nv_mov_b32 v11, 0\nv_lshlrev_b32 v7, 5, v0\ns_mov_b32 s37, {WS_FLAG}")
    A("buffer_store_dwordx4 v[8:11], v7, s[16:19], s37 offen\nbuffer_store_dwordx4 v[8:11], v7, s[16:19], s37 offen offset:16")
    A("s_waitcnt vmcnt(0)")
    A("K1_g1:")
    for k in range(8): A(f"v_mov_b32 v{8+k}, 0")
    A("s_waitcnt vmcnt(20)")
    nl2e = f2u(-1.4426950408889634)
    A("s_movk_i32 s43, 0x1f8")
    for i in range(20):
        src = C + i//2
        A(f"v_lshlrev_b32 v112, 16, v{src}" if i % 2 == 0 else f"v_and_b32 v112, 0xffff0000, v{src}")
        A(f"v_mul_f32 v113, {nl2e}, v112\nv_exp_f32 v113, v113\nv_add_f32 v116, 1.0, v113\nv_rcp_f32 v117, v116\nv_mul_f32 v113, v112, v117")
        A("v_fma_f32 v116, -v116, v113, v112\nv_cmp_class_f32 vcc, v116, s43\nv_fma_f32 v116, v116, v117, v113\nv_cndmask_b32 v113, v113, v116, vcc")
        A(f"v_cvt_pk_bf16_f32 v{110+4*(i&1)}, v113, 0\nv_cvt_pk_bf16_f32 v{111+4*(i&1)}, 0, v113")
        A(f"s_waitcnt vmcnt({19-i})")
        for k in range(4):
            A(f"v_dot2c_f32_bf16 v{8+2*k}, v{X+4*i+k}, v{110+4*(i&1)}\nv_dot2c_f32_bf16 v{9+2*k}, v{X+4*i+k}, v{111+4*(i&1)}")
    A("v_lshlrev_b32 v5, 5, v0\nv_lshlrev_b32 v6, 2, v2")
    A("ds_write_b128 v5, v[8:11]\nds_write_b128 v5, v[12:15] offset:16")
    A("s_waitcnt lgkmcnt(0)\ns_barrier")
    A("s_cmp_lg_u32 s3, 0\ns_cbranch_scc1 K1_fin")
    for i in range(32): A(f"ds_read_b32 v{X+i}, v6 offset:{256*i}")
    A("s_waitcnt lgkmcnt(0)")
    for st in (16, 8, 4, 2, 1):
        for i in range(st): A(f"v_add_f32 v{X+i}, v{X+i}, v{X+i+st}")
    A(f"v_cvt_pk_bf16_f32 v{X}, v{X}, v{X}\nv_lshlrev_b32 v{X}, 16, v{X}")
    divmod_const(A, 38, 39, 32, 10)
    A("s_cmp_eq_u32 s38, 0\ns_cbranch_scc0 K1_g2")
    A(f"v_mul_f32 v{X}, 0x45000000, v{X}")
    A("K1_g2:")
    A("s_cmp_eq_u32 s38, 1\ns_cselect_b32 s39, 1, 0\ns_cmp_eq_u32 s38, 4\ns_cselect_b32 s39, 1, s39\ns_cmp_eq_u32 s39, 1\ns_cbranch_scc0 K1_g3")
    A(f"v_add_f32 v{X}, 1.0, v{X}\nv_cvt_pk_bf16_f32 v{X}, v{X}, v{X}\nv_lshlrev_b32 v{X}, 16, v{X}")
    A("K1_g3:")
    A(f"s_lshl_b32 s37, s32, 8\ns_add_u32 s37, s37, {WS_MOD}\nbuffer_store_dword v{X}, v6, s[16:19], s37 offen")
    A("s_branch K1_fin")
    A("K1_pack:")
    A.c("role P: rewrite weights in MFMA fragment order")
    A(f"s_sub_u32 s32, s2, {NA+NG}")
    A("v_lshrrev_b32 v3, 3, v2\nv_and_b32 v4, 7, v2")
    A("v_lshrrev_b32 v5, 4, v2\nv_bfe_u32 v6, v2, 2, 2\nv_and_b32 v7, 3, v2")
    A("s_lshl_b32 s40, s3, 12\nv_lshlrev_b32 v12, 4, v2")
    A(f"s_cmp_ge_u32 s32, {NPG}\ns_cbranch_scc1 K1_packd")
    divmod_const(A, 33, 34, 32, 10)
    A("v_mul_u32_u24 v8, 3072, v3\nv_lshl_add_u32 v8, v4, 4, v8")
    A("s_lshl_b32 s35, s34, 2\ns_add_u32 s35, s35, s3")
    A("s_mul_i32 s36, s35, 49152\ns_lshl_b32 s37, s33, 7\ns_add_u32 s36, s36, s37\ns_add_u32 s37, s36, 24576")
    A("v_and_b32 v9, 1, v5\nv_lshlrev_b32 v9, 11, v9\nv_lshrrev_b32 v10, 1, v5\nv_lshl_add_u32 v10, v10, 3, v6\nv_lshl_add_u32 v9, v10, 7, v9")
    A("v_and_b32 v10, 1, v7\nv_lshlrev_b32 v10, 1, v10\nv_lshrrev_b32 v11, 1, v7\nv_or_b32 v10, v10, v11\nv_lshl_add_u32 v9, v10, 3, v9\nv_add_u32 v9, s40, v9")
    A("s_waitcnt lgkmcnt(0)")
    srd(A, 8, 24, 640*1536*2)
    srd(A, 12, 26, 640*1536*2)
    srd(A, 16, 20, WS_END)
    A("s_mov_b32 m0, s40\ns_nop 0\nbuffer_load_dwordx4 v8, s[8:11], s36 offen lds")
    A("s_add_u32 m0, s40, 1024\ns_nop 0\nbuffer_load_dwordx4 v8, s[8:11], s37 offen lds")
    A("s_add_u32 m0, s40, 2048\ns_nop 0\nbuffer_load_dwordx4 v8, s[12:15], s36 offen lds")
    A("s_add_u32 m0, s40, 3072\ns_nop 0\nbuffer_load_dwordx4 v8, s[12:15], s37 offen lds")
    for T in range(4):
        A(f"s_lshl_b32 s38, s33, 2\ns_add_u32 s38, s38, {T}")
        divmod_const(A, 41, 42, 38, 6)
        A(f"s_mul_i32 s41, s41, 245760\ns_lshl_b32 s42, s42, 10\ns_add_u32 s41, s41, s42\ns_mul_i32 s42, s35, 6144\ns_add_u32 s41, s41, s42\ns_add_u32 s{44+T}, s41, {WS_WGU}")
    A("s_waitcnt vmcnt(0)")
    for T in range(4):
        for h in range(2): A(f"ds_read_b64_tr_b16 {vr(16+4*T+2*h,2)}, v9 offset:{h*512+T*32}")
    for T in range(4):
        A(f"s_waitcnt lgkmcnt({6-2*T})\nbuffer_store_dwordx4 {vr(16+4*T,4)}, v12, s[16:19], s{44+T} offen")
    A("s_branch K1_fin")
    A("K1_packd:")
    A(f"s_sub_u32 s32, s32, {NPG}")
    divmod_const(A, 33, 34, 32, 24)
    A("v_mul_u32_u24 v8, 1280, v3\nv_lshl_add_u32 v8, v4, 4, v8")
    A("s_lshr_b32 s35, s3, 1\ns_lshl_b32 s36, s34, 1\ns_add_u32 s35, s35, s36")
    A("s_and_b32 s38, s3, 1\ns_lshl_b32 s39, s33, 1\ns_add_u32 s38, s38, s39")
    A("s_mul_i32 s36, s35, 40960\ns_lshl_b32 s37, s38, 7\ns_add_u32 s36, s36, s37")
    A("v_lshl_add_u32 v9, v5, 3, v6\nv_lshlrev_b32 v9, 7, v9\nv_lshl_add_u32 v9, v7, 3, v9\nv_add_u32 v9, s40, v9")
    A("s_waitcnt lgkmcnt(0)")
    srd(A, 8, 28, 1536*640*2)
    srd(A, 16, 20, WS_END)
    for p in range(4):
        A(f"s_add_u32 m0, s40, {1024*p}\ns_add_u32 s37, s36, {10240*p}\nbuffer_load_dwordx4 v8, s[8:11], s37 offen lds")
    for T in range(4):
        A(f"s_lshl_b32 s39, s38, 2\ns_add_u32 s39, s39, {T}")
        divmod_const(A, 41, 42, 39, 5)
        A(f"s_mul_i32 s41, s41, 245760\ns_lshl_b32 s42, s42, 10\ns_add_u32 s41, s41, s42\ns_mul_i32 s42, s35, 5120\ns_add_u32 s41, s41, s42\ns_add_u32 s{44+T}, s41, {WS_WD}")
    A("s_waitcnt vmcnt(0)")
    for T in range(4):
        for h in range(2): A(f"ds_read_b64_tr_b16 {vr(16+4*T+2*h,2)}, v9 offset:{h*512+T*32}")
    for T in range(4):
        A(f"s_waitcnt lgkmcnt({6-2*T})\nbuffer_store_dwordx4 {vr(16+4*T,4)}, v12, s[16:19], s{44+T} offen")
    A("K1_fin:")
    if stamps:
        A("s_waitcnt vmcnt(0)\ns_memrealtime s[62:63]\ns_waitcnt lgkmcnt(0)")
        A(f"s_lshl_b32 s37, s2, 5\ns_lshl_b32 s38, s3, 3\ns_add_u32 s37, s37, s38\ns_add_u32 s37, s37, {WS_DBG}")
        A("v_mov_b32 v4, s60\nv_mov_b32 v5, s62\nv_mov_b32 v6, 0\ns_mov_b64 exec, 1\nbuffer_store_dwordx2 v[4:5], v6, s[16:19], s37 offen")
    A("K1_end:\ns_endpgm")
    return kd(name, 128, 0, 80)
```

```python
from asmlib import *
from layout import *
from k1 import srd, f2u
import math, struct
import numpy as np

K2_LDS = 163840
U_OFF, RSU = 81920, 1288
RS2 = 224
WSLOT0 = 65536

def bf16_bits(x):
    u = struct.unpack("<I", struct.pack("<f", x))[0]
    return ((u + 0x7fff + ((u >> 16) & 1)) >> 16) & 0xffff
def f32_bits(x): return struct.unpack("<I", struct.pack("<f", x))[0]
def cosr(num, den, q=0):
    v = math.cos(2*math.pi*((num % den)/den + q/4.0))
    return 0.0 if abs(v) < 1e-12 else v

def table_regs():
    T = np.zeros((68, 64), np.uint32)
    for l in range(64):
        m = l & 15; g = l >> 4
        for mt in range(2):
            e1 = 8*mt + 2*(m >> 2) + ((m & 3) >> 1); ro = m & 1
            vals = []
            for jj in range(8):
                h, r = divmod(jj, 4)
                d1 = 2*(4*(g & 1) + r) + (g >> 1)
                vals.append(bf16_bits(cosr(e1*d1, 16, ro - h)))
            for k in range(4): T[4*mt+k, l] = vals[2*k] | (vals[2*k+1] << 16)
        for mt in range(2):
            for nt in range(3):
                for pr in range(2):
                    e1 = 8*mt + 2*g + pr; d2 = 16*nt + m
                    i = 8 + 2*((mt*3 + nt)*2 + pr)
                    T[i, l] = f32_bits(cosr(e1*d2, 640)); T[i+1, l] = f32_bits(cosr(e1*d2, 640, -1))
        for mt in range(3):
            for ks in range(3):
                e2 = 16*mt + m; vals = []
                for jj in range(8):
                    d2 = 16*ks + 4*g + (jj >> 1)
                    v = 0.0 if (e2 >= 40 or d2 >= 40) else cosr(e2*d2, 40, -(jj & 1))
                    vals.append(bf16_bits(v))
                for k in range(4): T[32 + 4*(3*mt+ks) + k, l] = vals[2*k] | (vals[2*k+1] << 16)
    return T
def tables():
    T = table_regs().reshape(17, 4, 64).transpose(0, 2, 1).reshape(-1)
    L = [".p2align 8", ".type K2_table,@object", "K2_table:"]
    for i in range(0, len(T), 8):
        L.append(".long " + ",".join("0x%x" % v for v in T[i:i+8]))
    L.append(".size K2_table, %d" % (4*len(T)))
    return L

class VM:
    def __init__(self, A): self.A = A; self.q = []
    def op(self, text, tag): self.A(text); self.q.append(tag)
    def wait(self, *tags, extra=""):
        last = max([i for i, t in enumerate(self.q) if t in tags], default=-1)
        n = len(self.q) - 1 - last
        assert n <= 63
        if last >= 0:
            self.A(f"s_waitcnt vmcnt({n}) {extra}".strip()); self.q = self.q[last+1:]
        elif extra: self.A(f"s_waitcnt {extra}")
    def drain(self): self.A("s_waitcnt vmcnt(0)"); self.q = []

sW, sU, sSG, sQ, sGI = 3, 22, 23, 24, 25
def row_of(A, vT, vP, vHW, tmp):
    A(f"v_lshlrev_b32 v{vT}, 6, v{vP}\ns_cmp_eq_u32 s{sU}, 0\ns_cselect_b32 s40, 0xfffffc20, s{sU}")
    A(f"v_mov_b32 v{tmp}, s{sU}\nv_cmp_le_u32 vcc, 16, v{vP}\ns_nop 0\nv_mov_b32 v{tmp+1}, s40\nv_cndmask_b32 v{tmp}, v{tmp}, v{tmp+1}, vcc\nv_add_u32 v{vT}, v{vT}, v{tmp}")
    A(f"v_sub_u32 v{tmp}, 2048, v{vT}\nv_cmp_eq_u32 vcc, 0, v{vT}\nv_mov_b32 v{tmp+1}, 1024\nv_cndmask_b32 v{tmp}, v{tmp}, v{tmp+1}, vcc")
    A(f"v_cmp_eq_u32 vcc, 1, v{vHW}\nv_cndmask_b32 v{vT}, v{vT}, v{tmp}, vcc")

def stamp(A, on, k):
    if on: A(f"s_memrealtime s[{64+2*k}:{65+2*k}]")

def prologue(A, name, stamps):
    A(f".globl {name}\n.p2align 8\n.type {name},@function\n{name}:")
    stamp(A, stamps, 0)
    A(f"s_cmp_ge_u32 s2, 256\ns_cbranch_scc1 {name}_end")
    A(f"s_load_dwordx2 s[16:17], s[0:1], {KA_WS}\ns_load_dwordx2 s[8:9], s[0:1], {KA_X}\ns_load_dwordx2 s[12:13], s[0:1], {KA_OUT}")
    A("v_lshrrev_b32 v1, 6, v0\nv_and_b32 v2, 63, v0\nv_lshlrev_b32 v3, 4, v2")
    A(f"v_readfirstlane_b32 s{sW}, v1")
    A(f"s_and_b32 s26, s2, 7\ns_lshr_b32 s27, s2, 3\ns_and_b32 s{sGI}, s27, 15\ns_lshr_b32 s27, s27, 4\ns_lshl_b32 s{sQ}, s26, 1\ns_add_u32 s{sQ}, s{sQ}, s27")
    A(f"s_lshr_b32 s27, s{sGI}, 3\ns_lshl_b32 s{sU}, s{sQ}, 1\ns_add_u32 s{sU}, s{sU}, s27\ns_and_b32 s{sSG}, s{sGI}, 7")
    A(f"s_mov_b32 s10, {hex(S*D*2)}\ns_mov_b32 s11, 0x20000\ns_mov_b32 s14, {hex(S*D*2)}\ns_mov_b32 s15, 0x20000\ns_mov_b32 s18, {hex(WS_END)}\ns_mov_b32 s19, 0x20000")
    A("v_and_b32 v4, 15, v2\nv_lshrrev_b32 v5, 4, v2")
    A("s_waitcnt lgkmcnt(0)")

def epilogue(A, name, stamps, nst, slot):
    if stamps:
        A("s_waitcnt vmcnt(0)")
        stamp(A, True, nst)
        A("s_waitcnt lgkmcnt(0)")
        A(f"s_lshl_b32 s37, s2, 8\ns_lshl_b32 s38, s{sW}, 6\ns_add_u32 s37, s37, s38\ns_add_u32 s37, s37, {WS_DBG + 0x10000*slot}\ns_mov_b64 exec, 1\nv_mov_b32 v6, 0")
        for k in range(nst+1):
            A(f"v_mov_b32 v4, s{64+2*k}\nbuffer_store_dword v4, v6, s[16:19], s37 offen offset:{4*k}")
    A(f"{name}_end:\ns_endpgm")

def phase_c(A, vm, name, sc, stamps, after_issue=None, after_s1=None):
    C1, ACC, FA = 16, 56, 96
    M2, TB, XR, GA, CB, SB = 128, 136, 204, 16, 36, 214
    A.c("phase C: second sequence-DFT step, hidden DFT, residual, LN2")
    A(f"s_mul_i32 s28, s{sW}, 20480\ns_mul_i32 s29, s{sU}, 81920\ns_add_u32 s29, s29, s28")
    if WS_V: A(f"s_add_u32 s29, s29, {WS_V}")
    for pp in range(5):
        A(f"s_add_u32 m0, s28, {4096*pp}")
        if pp: A("s_add_u32 s29, s29, 4096")
        else: A("s_nop 0")
        for p in range(4): vm.op(f"buffer_load_dwordx4 v3, s[16:19], s29 offen offset:{1024*p} lds", f"V{pp}")
    A(f"s_mul_i32 s30, s{sW}, 640\ns_add_u32 s30, s30, {WS_MOD+2560}\nv_lshlrev_b32 v6, 4, v5")
    for T in range(10): vm.op(f"buffer_load_dwordx4 {vr(C1+4*T,4)}, v6, s[16:19], s30 offen offset:{64*T}", "C1")
    A(f"s_getpc_b64 s[20:21]\n{name}_pc:\ns_add_u32 s20, s20, K2_table-{name}_pc\ns_addc_u32 s21, s21, 0")
    for k in range(17):
        if k and k % 4 == 0: A("s_add_u32 s20, s20, 4096\ns_addc_u32 s21, s21, 0")
        vm.op(f"global_load_dwordx4 {vr(TB+4*k,4)}, v3, s[20:21] offset:{1024*(k%4)}", "TB")
    A(f"v_lshrrev_b32 v7, 5, v2\nv_and_b32 v8, 31, v2\ns_lshl_b32 s31, s{sSG}, 2\ns_add_u32 s32, s31, s{sW}\nv_mov_b32 v9, s32")
    row_of(A, 10, 9, 7, 11)
    A("v_mul_u32_u24 v10, 1280, v10\nv_lshl_add_u32 v10, v8, 3, v10")
    for i in range(5): vm.op(f"buffer_load_dwordx2 {vr(XR+2*i,2)}, v10, s[8:11], 0 offen offset:{256*i}", "X")
    A(f"v_lshlrev_b32 v14, 4, v8\ns_mov_b32 s33, {WS_MOD+3*2560}")
    for i in range(5): vm.op(f"buffer_load_dwordx4 {vr(SB+4*i,4)}, v14, s[16:19], s33 offen offset:{512*i}", "SB")
    if after_issue: after_issue()
    A(f"s_or_b32 s34, s{sU}, s{sSG}\ns_cmp_eq_u32 s34, 0\ns_cselect_b32 s34, 1, 0\ns_cselect_b32 s36, 0x03000300, 0\ns_or_b32 s36, s36, 0x00ff00ff\ns_mov_b32 s37, s36")
    A("v_lshrrev_b32 v9, 1, v4\nv_add_u32 v9, s31, v9\nv_and_b32 v9, 31, v9\nv_mov_b32 v13, 0")
    row_of(A, 10, 9, 13, 11)
    A("v_mov_b32 v11, 1024\nv_cmp_le_u32 vcc, 8, v4\nv_cndmask_b32 v10, v10, v11, vcc")
    A("v_and_b32 v11, 1, v4\nv_cvt_f32_u32 v11, v11\nv_mul_f32 v11, 0x3e800000, v11")
    A("v_bfe_u32 v12, v10, 5, 1\nv_cvt_f32_u32 v12, v12")
    A("v_cvt_f32_u32 v10, v10\nv_mul_f32 v10, 0x3a000000, v10")
    A("v_cvt_f32_u32 v9, v5\nv_add_f32 v9, v9, v9\nv_fma_f32 v11, v9, v10, v11")
    A(f"s_cmp_eq_u32 s{sU}, 0\ns_cselect_b32 s40, 0, 0xbe800000\ns_cselect_b32 s41, 1.0, 0\ns_cselect_b32 s42, 0, 1.0")
    A("v_add_f32 v13, s40, v11")
    A("v_mul_f32 v12, s41, v12\nv_sub_f32 v9, 1.0, v12\nv_add_f32 v12, s42, v12")
    tmp = ACC
    for j in range(2):
        for h in range(2):
            for r in range(4):
                A(f"v_fmamk_f32 v{tmp+8*j+4*h+r}, v10, {f2u(16*j+8*h+(r>>1))}, v{13 if r & 1 else 11}")
    for k in range(16): A(f"v_cos_f32 v{tmp+k}, v{tmp+k}")
    for k in range(16): A(f"v_mul_f32 v{tmp+k}, v{tmp+k}, v{12 if k & 1 else 9}")
    for k in range(8): A(f"v_cvt_pk_bf16_f32 v{M2+k}, v{tmp+2*k}, v{tmp+2*k+1}")
    A("v_bfe_u32 v9, v2, 2, 2\nv_lshrrev_b32 v11, 1, v9\nv_lshl_add_u32 v11, v5, 1, v11\nv_lshlrev_b32 v11, 7, v11\nv_and_b32 v9, 1, v9\nv_lshl_add_u32 v11, v9, 6, v11")
    A("v_and_b32 v9, 3, v2\nv_lshl_add_u32 v11, v9, 3, v11\nv_and_b32 v12, 1, v5\nv_lshl_add_u32 v11, v12, 5, v11\nv_add_u32 v9, s28, v11\nv_xor_b32 v11, 32, v9")
    A(f"v_mul_u32_u24 v12, {RSU}, v4\nv_lshl_add_u32 v12, v5, 3, v12\ns_mul_i32 s35, s{sW}, 320\ns_add_u32 s35, s35, {U_OFF}\nv_add_u32 v12, s35, v12")
    def reads(P):
        for hf in range(2):
            for j in range(2):
                for h in range(2):
                    A(f"ds_read_b64_tr_b16 {vr(FA+16*(P&1)+8*hf+4*j+2*h,2)}, v{11 if hf else 9} offset:{P*4096+j*2048+h*1024}")
    def mm(P):
        for j in range(2):
            for hf in range(2):
                a = ACC + 8*P + 4*hf
                A(f"v_mfma_f32_16x16x32_bf16 {vr(a,4)}, {vr(FA+16*(P&1)+8*hf+4*j,4)}, {vr(M2+4*j,4)}, {vr(a,4) if j else 0}")
    vm.wait("V0"); stamp(A, stamps, 1)
    reads(0)
    for P in range(5):
        if P < 4:
            vm.wait(f"V{P+1}"); reads(P+1); A("s_waitcnt lgkmcnt(8)")
        else: A("s_waitcnt lgkmcnt(0)")
        mm(P)
    vm.wait("C1")
    for T in range(10):
        a = ACC + 4*T
        A(f"v_pk_mul_f32 {vr(a,2)}, {vr(a,2)}, {vr(C1+4*T,2)}\nv_pk_mul_f32 {vr(a+2,2)}, {vr(a+2,2)}, {vr(C1+4*T+2,2)}")
    A(f"s_cmp_eq_u32 s34, 0\ns_cbranch_scc1 {name}_c1")
    A(f"s_sub_u32 s30, s30, 2560")
    for T in range(10): A(f"buffer_load_dwordx4 {vr(C1+4*T,4)}, v6, s[16:19], s30 offen offset:{64*T}")
    A("s_mov_b32 s40, 0x00010001\ns_mov_b32 s41, 0x00010001\ns_waitcnt vmcnt(0)\ns_mov_b64 exec, s[40:41]")
    for k in range(40): A(f"v_add_f32 v{ACC+k}, v{ACC+k}, v{C1+k}")
    A(f"s_mov_b64 exec, -1\n{name}_c1:")
    for T in range(10):
        a = ACC + 4*T
        A(f"v_cvt_pk_bf16_f32 v{a}, v{a}, v{a+1}\nv_cvt_pk_bf16_f32 v{a+1}, v{a+2}, v{a+3}")
    A("s_mov_b64 exec, s[36:37]")
    for T in range(10): A(f"ds_write_b64 v12, {vr(ACC+4*T,2)} offset:{32*T}")
    A("s_mov_b64 exec, -1")
    A(f"s_mov_b32 s33, {WS_MOD+2*2560}\ns_mov_b32 s35, {WS_MOD+4*2560}")
    for i in range(5): vm.op(f"buffer_load_dwordx4 {vr(GA+4*i,4)}, v14, s[16:19], s33 offen offset:{512*i}", "GA")
    for i in range(5): vm.op(f"buffer_load_dwordx4 {vr(CB+4*i,4)}, v14, s[16:19], s35 offen offset:{512*i}", "CB")
    if after_s1: after_s1()
    A(f"s_lshl_b32 s35, s{sW}, 14")
    A("v_bfe_u32 v9, v2, 2, 2\nv_and_b32 v11, 1, v5\nv_lshl_add_u32 v9, v11, 2, v9\nv_lshrrev_b32 v11, 1, v5\nv_lshl_add_u32 v9, v9, 1, v11\nv_mul_u32_u24 v9, 80, v9")
    A(f"v_and_b32 v11, 3, v2\nv_lshl_add_u32 v9, v11, 3, v9\ns_mul_i32 s38, s{sW}, {2*RSU}\ns_add_u32 s38, s38, {U_OFF}\nv_add_u32 v9, s38, v9")
    A(f"v_mul_u32_u24 v11, {2*RS2}, v5\nv_lshl_add_u32 v11, v4, 2, v11\nv_add_u32 v11, s35, v11")
    A(f"v_mul_u32_u24 v12, {RS2}, v4\nv_lshl_add_u32 v12, v5, 4, v12\nv_add_u32 v12, s35, v12")
    A("v_lshl_add_u32 v15, v5, 6, v4\nv_lshlrev_b32 v15, 2, v15\ns_add_u32 s38, s35, 4096\nv_add_u32 v13, s38, v15")
    A(f"s_add_u32 s38, s35, {8192+320}\nv_sub_u32 v15, s38, v15")
    ZT = FA
    A(f"v_mov_b32 v{ZT}, 0\nv_mov_b32 v{ZT+1}, 0\nv_mov_b32 v{ZT+2}, 0\nv_mov_b32 v{ZT+3}, 0")
    A(f"v_lshrrev_b32 v{ZT+4}, 1, v2\nv_mul_u32_u24 v{ZT+4}, {RS2}, v{ZT+4}\nv_and_b32 v{ZT+5}, 1, v2\nv_lshl_add_u32 v{ZT+4}, v{ZT+5}, 4, v{ZT+4}\nv_add_u32 v{ZT+4}, s35, v{ZT+4}")
    A(f"v_cmp_eq_u32 vcc, 0, v2\nv_subrev_u32 v{ZT+6}, 2560, v15\nv_cndmask_b32 v{ZT+6}, v15, v{ZT+6}, vcc")
    A("s_mov_b32 s38, 0x00ff00ff\ns_mov_b32 s39, 0x00ff00ff")
    A("s_waitcnt lgkmcnt(0)\ns_barrier")
    stamp(A, stamps, 2)
    A(f"s_mov_b32 exec_hi, 0\nds_write_b128 v{ZT+4}, {vr(ZT,4)} offset:160\ns_mov_b64 exec, -1")
    vm.wait("TB")
    UB, ZA, TT, BB, YY = ACC, ACC+12, FA+8, ACC, ACC+12
    def chain(uoff, fwd_off, rev):
        for nt in range(3):
            for h in range(2): A(f"ds_read_b64_tr_b16 {vr(UB+4*nt+2*h,2)}, v9 offset:{uoff + h*RSU + nt*32}")
        for nt in range(3):
            A(f"s_waitcnt lgkmcnt({4-2*nt})")
            for mt in range(2):
                A(f"v_mfma_f32_16x16x32_bf16 {vr(ZA+4*(mt*3+nt),4)}, {vr(TB+4*mt,4)}, {vr(UB+4*nt,4)}, 0")
        for nt in range(3):
            for mt in range(2):
                for pr in range(2):
                    z = ZA + 4*(mt*3+nt) + 2*pr; w = TB + 8 + 2*((mt*3+nt)*2+pr); t = TT + 2*(2*mt+pr)
                    A(f"v_pk_mul_f32 {vr(t,2)}, {vr(z,2)}, {vr(w,2)} op_sel_hi:[1,0]")
                    A(f"v_pk_fma_f32 {vr(t,2)}, {vr(z,2)}, {vr(w,2)}, {vr(t,2)} op_sel:[1,1,0] op_sel_hi:[0,1,1] neg_hi:[0,1,0]")
            for k in range(4): A(f"v_cvt_pk_bf16_f32 v{TT+8+4*nt+k}, v{TT+2*k}, v{TT+2*k+1}")
            if nt == 2: A("s_mov_b64 exec, s[38:39]")
            for mt in range(2):
                for pr in range(2): A(f"ds_write_b32 v11, v{TT+8+4*nt+2*mt+pr} offset:{(8*mt+pr)*RS2 + nt*64}")
            if nt == 2: A("s_mov_b64 exec, -1")
        A("s_waitcnt lgkmcnt(0)")
        for ks in range(3): A(f"ds_read_b128 {vr(BB+4*ks,4)}, v12 offset:{64*ks}")
        for ks in range(3):
            A(f"s_waitcnt lgkmcnt({2-ks})")
            for mt in range(3):
                A(f"v_mfma_f32_16x16x32_bf16 {vr(YY+4*mt,4)}, {vr(TB+32+4*(3*mt+ks),4)}, {vr(BB+4*ks,4)}, {vr(YY+4*mt,4) if ks else 0}")
        for mt in range(3):
            if mt == 2: A("s_mov_b32 exec_hi, 0")
            for r in range(4):
                A(f"ds_write_b32 v13, v{YY+4*mt+r} offset:{fwd_off + (256*mt+16*r)*4}")
                if rev: A(f"ds_write_b32 v{ZT+6 if (mt == 0 and r == 0) else 15}, v{YY+4*mt+r} offset:{(560-256*mt-16*r)*4}")
        A("s_mov_b64 exec, -1")
    A(f"s_lshl_b32 s40, s{sW}, 1\ns_cmp_eq_u32 s40, 0\ns_cselect_b32 s40, s34, 0\ns_cmp_eq_u32 s40, 1\ns_cbranch_scc1 {name}_c2")
    chain(0, 0, True)
    A(f"s_branch {name}_c3\n{name}_c2:")
    chain(0, 0, False)
    chain(8*RSU, 4096, False)
    A(f"{name}_c3:")
    Y, X1 = ACC, FA
    A(f"v_lshlrev_b32 v9, 12, v7\nv_add_u32 v9, v9, v14\ns_add_u32 s38, s35, 4096\nv_add_u32 v9, s38, v9")
    A(f"s_lshl_b32 s38, s{sU}, 6\ns_lshl_b32 s39, s{sSG}, 3\ns_add_u32 s38, s38, s39\ns_lshl_b32 s39, s{sW}, 1\ns_add_u32 s38, s38, s39\ns_mul_i32 s38, s38, 1280")
    A(f"s_add_u32 s39, s38, {WS_X1}\ns_add_u32 s38, s38, {WS_H2}\nv_mul_u32_u24 v10, 1280, v7\nv_lshl_add_u32 v10, v8, 3, v10")
    vm.wait("X")
    for k in range(10):
        A(f"v_lshlrev_b32 v{X1+2*k}, 16, v{XR+k}\nv_and_b32 v{X1+2*k+1}, 0xffff0000, v{XR+k}")
    A("s_waitcnt lgkmcnt(0)")
    for i in range(5): A(f"ds_read_b128 {vr(Y+4*i,4)}, v9 offset:{512*i}")
    vm.wait("GA")
    SM, SQ = 12, 130
    for i in range(5):
        A(f"s_waitcnt lgkmcnt({4-i})")
        for k in (2*i, 2*i+1):
            A(f"v_pk_fma_f32 {vr(X1+2*k,2)}, {vr(GA+2*k,2)}, {vr(Y+2*k,2)}, {vr(X1+2*k,2)}")
            if k == 0: A(f"v_mov_b32 v{SM}, v{X1}\nv_mov_b32 v{SM+1}, v{X1+1}\nv_pk_mul_f32 {vr(SQ,2)}, {vr(X1,2)}, {vr(X1,2)}")
            else: A(f"v_pk_add_f32 {vr(SM,2)}, {vr(SM,2)}, {vr(X1+2*k,2)}\nv_pk_fma_f32 {vr(SQ,2)}, {vr(X1+2*k,2)}, {vr(X1+2*k,2)}, {vr(SQ,2)}")
    A(f"v_add_f32 v{SM}, v{SM}, v{SM+1}\nv_add_f32 v{SQ}, v{SQ}, v{SQ+1}")
    for k in range(10): A(f"v_cvt_pk_bf16_f32 v{XR+k}, v{X1+2*k}, v{X1+2*k+1}")
    for i in range(5): vm.op(f"buffer_store_dwordx2 {vr(XR+2*i,2)}, v10, s[16:19], s39 offen offset:{256*i} {sc}", "ST")
    for rot in (8, 4, 2, 1):
        for r in (SM, SQ): A(f"v_add_f32_dpp v{r}, v{r}, v{r} row_ror:{rot} row_mask:0xf bank_mask:0xf")
    for r in (SM, SQ): A(f"v_mov_b32 v{r+1}, v{r}")
    for r in (SM, SQ): A(f"v_permlane16_swap_b32 v{r}, v{r+1}")
    for r in (SM, SQ): A(f"v_add_f32 v{r}, v{r}, v{r+1}")
    inv = f2u(1.0/D)
    A(f"v_mul_f32 v{SM}, {inv}, v{SM}\nv_mul_f32 v{SQ}, {inv}, v{SQ}\nv_fma_f32 v{SQ}, -v{SM}, v{SM}, v{SQ}\nv_max_f32 v{SQ}, 0, v{SQ}\nv_add_f32 v{SQ}, {f2u(1e-5)}, v{SQ}\nv_rsq_f32 v{SQ}, v{SQ}")
    vm.wait("CB", "SB")
    for k in range(10):
        A(f"v_pk_add_f32 {vr(X1+2*k,2)}, {vr(X1+2*k,2)}, {vr(SM,2)} op_sel_hi:[1,0] neg_lo:[0,1] neg_hi:[0,1]")
        A(f"v_pk_mul_f32 {vr(CB+2*k,2)}, {vr(CB+2*k,2)}, {vr(SQ,2)} op_sel_hi:[1,0]")
    for k in range(10):
        A(f"v_pk_fma_f32 {vr(X1+2*k,2)}, {vr(X1+2*k,2)}, {vr(CB+2*k,2)}, {vr(SB+2*k,2)}")
    for k in range(10):
        A(f"v_cvt_pk_bf16_f32 v{Y+k}, v{X1+2*k}, v{X1+2*k+1}")
    for i in range(5): vm.op(f"buffer_store_dwordx2 {vr(Y+2*i,2)}, v10, s[16:19], s38 offen offset:{256*i} {sc}", "ST")

NST = 10
def slot_of(s): return (s + 2) & 3
class PhaseD:
    def __init__(self, A, vm, sc): self.A, self.vm, self.sc = A, vm, sc
    def setup_w(self):
        A = self.A
        A(f"s_mul_i32 s44, s{sGI}, 245760\ns_mul_i32 s45, s{sW}, 6144\ns_add_u32 s44, s44, s45\ns_add_u32 s44, s44, {WS_WGU}")
        A(f"s_add_u32 s52, s45, {WSLOT0}")
        A(f"s_cmp_ge_u32 s{sGI}, 10\ns_cselect_b32 s50, 10, 0\ns_sub_u32 s50, s{sGI}, s50\ns_mov_b32 s51, s50")
    def issue_w(self, s):
        A, vm = self.A, self.vm
        ops = []
        so = 24576*slot_of(s)
        def first():
            A(f"s_mul_i32 s53, s50, 24576\ns_add_u32 s53, s53, s44\ns_add_u32 m0, s52, {so}\ns_add_u32 s50, s50, 1\ns_cmp_eq_u32 s50, 10\ns_cselect_b32 s50, 0, s50")
            vm.op("buffer_load_dwordx4 v3, s[16:19], s53 offen lds", f"W{s}")
        ops.append(first)
        for p in range(1, 4): ops.append(lambda p=p: vm.op(f"buffer_load_dwordx4 v3, s[16:19], s53 offen offset:{1024*p} lds", f"W{s}"))
        def fifth():
            A(f"s_add_u32 m0, s52, {so+4096}\ns_add_u32 s53, s53, 4096")
            vm.op("buffer_load_dwordx4 v3, s[16:19], s53 offen lds", f"W{s}")
        ops.append(fifth)
        ops.append(lambda: vm.op("buffer_load_dwordx4 v3, s[16:19], s53 offen offset:1024 lds", f"W{s}"))
        return ops
    def setup_h(self):
        A = self.A
        vH0, vH1 = 6, 7
        A("v_lshrrev_b32 v6, 3, v2\nv_mul_u32_u24 v6, 1280, v6\nv_and_b32 v7, 7, v2\nv_xor_b32 v7, v7, v5\nv_lshl_add_u32 v6, v7, 4, v6\nv_xor_b32 v7, 64, v6")
        A(f"s_lshl_b32 s45, s{sQ}, 7\ns_lshl_b32 s46, s{sW}, 5\ns_add_u32 s45, s45, s46\ns_mul_i32 s45, s45, 1280\ns_add_u32 s45, s45, {WS_H2}")
        A("s_add_u32 s46, s45, 9216\ns_add_u32 s47, s45, 18432\ns_add_u32 s48, s45, 27648")
        A(f"s_lshl_b32 s49, s{sW}, 12")
        A(f"s_lshr_b32 s54, s{sW}, 1\ns_and_b32 s55, s{sW}, 1\nv_and_b32 v12, 31, v2\nv_lshrrev_b32 v13, 5, v2\nv_bfe_u32 v14, v2, 1, 3")
        A("s_lshl_b32 s56, s54, 13\nv_lshlrev_b32 v12, 7, v12\nv_add_u32 v12, s56, v12")
        for ks in range(4):
            A(f"v_add_u32 v15, {2*ks}, v13\nv_xor_b32 v15, v15, v14\nv_lshl_add_u32 v{8+ks}, v15, 4, v12")
        A(f"s_mul_i32 s56, s55, 3072\ns_add_u32 s56, s56, {WSLOT0}\nv_add_u32 v12, s56, v3\nv_add_u32 v13, 49152, v12")
        A("v_bfe_u32 v14, v2, 4, 1\nv_mul_u32_u24 v14, 49152, v14\nv_lshrrev_b32 v15, 5, v2\nv_lshl_add_u32 v14, v15, 8, v14\nv_lshl_add_u32 v14, v4, 4, v14")
        A(f"s_lshl_b32 s56, s{sQ}, 1\ns_add_u32 s56, s56, s54\ns_mul_i32 s56, s56, 196608\ns_mul_i32 s57, s{sGI}, 6\ns_mul_i32 s58, s55, 3\ns_add_u32 s57, s57, s58\ns_lshl_b32 s57, s57, 9")
        A(f"s_add_u32 s56, s56, s57\ns_add_u32 s56, s56, {WS_G}\ns_add_u32 s57, s56, 98304")
    def issue_h(self, s):
        A, vm = self.A, self.vm
        so = 16384*slot_of(s)
        ops = []
        def mk(p):
            def f():
                if p == 0: A(f"s_lshl_b32 s58, s51, 7\ns_add_u32 m0, s49, {so}\ns_add_u32 s51, s51, 1\ns_cmp_eq_u32 s51, 10\ns_cselect_b32 s51, 0, s51")
                A(f"s_add_u32 s59, s{45+p}, s58")
                vm.op(f"buffer_load_dwordx4 v{6+(p&1)}, s[16:19], s59 offen offset:{1024*p} {self.sc} lds", f"H{s}")
            return f
        return [mk(p) for p in range(4)]
    def main(self, stamps, extra_ops=None):
        A, vm = self.A, self.vm
        FAr, FBr, ACC = 16, 40, 160
        def reads(s, ks):
            b = ks & 1; sl = slot_of(s); ops = []
            for T in range(3):
                ops.append(f"ds_read_b128 {vr(FAr+12*b+4*T,4)}, v{12+(sl>>1)} offset:{(sl&1)*24576+(ks*6+T)*1024}")
                if T < 2: ops.append(f"ds_read_b128 {vr(FBr+8*b+4*T,4)}, v{8+ks} offset:{sl*16384+T*4096}")
            return ops
        vm.wait("W0", "H0"); A("s_barrier"); stamp(A, stamps, 4)
        for x in reads(0, 0): A(x)
        pend = []
        for s in range(NST):
            for ks in range(4):
                b = ks & 1
                if ks == 3:
                    if s < NST-1:
                        vm.wait(f"W{s+1}", f"H{s+1}", extra="lgkmcnt(0)"); A("s_barrier")
                        rd = reads(s+1, 0)
                        if s+4 < NST: pend += self.issue_w(s+4) + self.issue_h(s+4)
                        if extra_ops: pend += extra_ops(s)
                    else:
                        A("s_waitcnt lgkmcnt(0)"); rd = []
                else:
                    A("s_waitcnt lgkmcnt(0)")
                    rd = reads(s, ks+1)
                i = 0
                for N in range(2):
                    for T in range(3):
                        a = ACC + 16*(2*T+N)
                        A(f"v_mfma_f32_32x32x16_bf16 {vr(a,16)}, {vr(FAr+12*b+4*T,4)}, {vr(FBr+8*b+4*N,4)}, {vr(a,16) if (s or ks) else 0}")
                        if i < 2:
                            for x in rd[2*i:2*i+2]: A(x)
                        elif i == 2:
                            for x in rd[4:]: A(x)
                        elif pend: pend.pop(0)()
                        i += 1
        assert not pend
        stamp(A, stamps, 5)
        k0 = -2*0.7978845608028654*1.4426950408889634; k1 = k0*0.044715
        A(f"s_mov_b32 s60, {f2u(k0)}\ns_mov_b32 s62, {f2u(k1)}\nv_mov_b32 v16, s60\nv_mov_b32 v17, s60")
        for N in range(2):
            for T in range(3):
                a = ACC + 16*(2*T+N); x = (N*3+T) & 1
                t = 20 + 12*x; o = t + 8
                for k in range(4): A(f"v_pk_mul_f32 {vr(t+2*k,2)}, {vr(a+2*k,2)}, {vr(a+2*k,2)}")
                for k in range(4): A(f"v_pk_fma_f32 {vr(t+2*k,2)}, {vr(t+2*k,2)}, s[62:63], v[16:17] op_sel_hi:[1,0,1]")
                for k in range(4): A(f"v_pk_mul_f32 {vr(t+2*k,2)}, {vr(t+2*k,2)}, {vr(a+2*k,2)}")
                for k in range(8): A(f"v_exp_f32 v{t+k}, v{t+k}")
                for k in range(4): A(f"v_pk_mul_f32 {vr(a+2*k,2)}, {vr(a+2*k,2)}, {vr(a+8+2*k,2)}")
                for k in range(4): A(f"v_pk_add_f32 {vr(t+2*k,2)}, {vr(t+2*k,2)}, 1.0 op_sel_hi:[1,0]")
                for k in range(8): A(f"v_rcp_f32 v{t+k}, v{t+k}")
                for k in range(4): A(f"v_pk_mul_f32 {vr(t+2*k,2)}, {vr(t+2*k,2)}, {vr(a+2*k,2)}")
                for k in range(4): A(f"v_cvt_pk_bf16_f32 v{o+k}, v{t+2*k}, v{t+2*k+1}")
                vm.op(f"buffer_store_dwordx4 {vr(o,4)}, v14, s[16:19], s{56+N} offen offset:{512*T} {self.sc}", "ST")

class PhaseE:
    def __init__(self, A, vm, sc): self.A, self.vm, self.sc = A, vm, sc
    def setup_w(self):
        self.A(f"s_mul_i32 s61, s{sSG}, 245760\ns_mul_i32 s63, s{sW}, 61440\ns_add_u32 s61, s61, s63\ns_add_u32 s61, s61, {WS_WD}")
    def issue_w(self, lo, hi):
        ops = []
        for x in range(lo, hi):
            def f(x=x):
                if x and x % 4 == 0: self.A("s_add_u32 s61, s61, 4096")
                self.vm.op(f"buffer_load_dwordx4 {ar(4*x,4)}, v3, s[16:19], s61 offen offset:{1024*(x%4)}", "WD")
            ops.append(f)
        return ops
    def main(self, stamps):
        A, vm = self.A, self.vm
        GF, AC = 64, 16
        A(f"s_mul_i32 s44, s{sU}, 196608\ns_mul_i32 s45, s{sW}, 12288\ns_add_u32 s44, s44, s45\ns_add_u32 s44, s44, {WS_G}")
        for ph in range(4):
            A(f"s_add_u32 s45, s{sW}, {ph+1}\ns_and_b32 s45, s45, 3\ns_mul_i32 s46, s45, 49152\ns_add_u32 s46, s46, s44")
            if ph < 3: A(f"s_mul_i32 s{48+ph}, s45, 15360")
            for i in range(12):
                if i and i % 4 == 0: A("s_add_u32 s46, s46, 4096")
                vm.op(f"buffer_load_dwordx4 {vr(GF+48*ph+4*i,4)}, v3, s[16:19], s46 offen offset:{1024*(i%4)} {self.sc}", f"G{ph}_{i}")
        A(f"s_lshl_b32 s45, s{sW}, 3\nv_lshrrev_b32 v6, 1, v4\nv_add_u32 v6, s45, v6\nv_and_b32 v7, 1, v4")
        row_of(A, 8, 6, 7, 9)
        A(f"s_mul_i32 s46, s{sSG}, 160\nv_mul_u32_u24 v8, 1280, v8\nv_lshl_add_u32 v8, v5, 3, v8")
        A(f"s_lshl_b32 s47, s{sU}, 6\ns_lshl_b32 s45, s{sW}, 4\ns_add_u32 s47, s47, s45\ns_mul_i32 s47, s47, 1280\ns_add_u32 s47, s47, s46\ns_add_u32 s47, s47, {WS_X1}")
        A("v_mul_u32_u24 v9, 1280, v4\nv_lshl_add_u32 v9, v5, 3, v9")
        A(f"s_mul_i32 s51, s{sSG}, 320\ns_add_u32 s51, s51, {WS_MOD+5*2560}\nv_lshlrev_b32 v10, 4, v5")
        for ph in range(3): A(f"v_add_u32 v{11+ph}, s{48+ph}, v3")
        A(f"s_mul_i32 s45, s{sW}, 15360\nv_add_u32 v14, s45, v3")
        X1, GB = GF, GF+12
        vm.wait("WD")
        for ph in range(4):
            ac = AC + 20*(ph & 1)
            for i in range(12):
                vm.wait(f"G{ph}_{i}")
                if ph == 0 and i == 0: stamp(A, stamps, 7)
                for T in range(5):
                    A(f"v_mfma_f32_16x16x32_bf16 {vr(ac+4*T,4)}, {ar(4*(5*i+T),4)}, {vr(GF+48*ph+4*i,4)}, {vr(ac+4*T,4) if i else 0}")
                if ph > 0 and i == 2:
                    pa = AC + 20*((ph-1) & 1)
                    for T in range(5): A(f"ds_write_b128 v{11+ph-1}, {vr(pa+4*T,4)} offset:{(ph-1)*5120+T*1024}")
                if ph == 1 and i == 3:
                    for T in range(5): vm.op(f"buffer_load_dwordx2 {vr(X1+2*T,2)}, v9, s[16:19], s47 offen offset:{32*T} {self.sc}", "X1")
                    for T in range(5): vm.op(f"buffer_load_dwordx4 {vr(GB+4*T,4)}, v10, s[16:19], s51 offen offset:{64*T}", "GB")
        A("s_waitcnt lgkmcnt(0)\ns_barrier")
        PR = GF + 48
        for p in range(3):
            for T in range(5): A(f"ds_read_b128 {vr(PR+20*p+4*T,4)}, v14 offset:{p*5120+T*1024}")
        vm.wait("X1", "GB")
        XU = GF + 32
        XU = 176
        for k in range(10): A(f"v_lshlrev_b32 v{XU+2*k}, 16, v{X1+k}\nv_and_b32 v{XU+2*k+1}, 0xffff0000, v{X1+k}")
        ac = AC + 20
        for p in range(3):
            A(f"s_waitcnt lgkmcnt({10-5*p})")
            for k in range(10): A(f"v_pk_add_f32 {vr(ac+2*k,2)}, {vr(ac+2*k,2)}, {vr(PR+20*p+2*k,2)}")
        for k in range(10): A(f"v_pk_fma_f32 {vr(ac+2*k,2)}, {vr(ac+2*k,2)}, {vr(GB+2*k,2)}, {vr(XU+2*k,2)}")
        for k in range(10): A(f"v_cvt_pk_bf16_f32 v{AC+k}, v{ac+2*k}, v{ac+2*k+1}")
        for T in range(5): vm.op(f"buffer_store_dwordx2 {vr(AC+2*T,2)}, v8, s[12:15], s46 offen offset:{32*T}", "OUT")

def group_sync(A, vm, name, idx):
    vm.drain()
    A("s_barrier")
    A(f"s_lshl_b32 s40, s{sQ}, 9\ns_add_u32 s40, s40, {WS_FLAG + 256*idx}")
    A(f"s_cmp_lg_u32 s{sW}, 0\ns_cbranch_scc1 {name}_sa{idx}")
    A("s_mov_b64 exec, 1\nv_mov_b32 v60, 1\nv_mov_b32 v61, 0\nbuffer_atomic_add v60, v61, s[16:19], s40 offen sc1\ns_mov_b64 exec, -1")
    A(f"{name}_sa{idx}:")
def group_wait(A, vm, name, idx):
    A(f"s_cmp_lg_u32 s{sW}, 0\ns_cbranch_scc1 {name}_sb{idx}")
    A(f"s_mov_b64 exec, 1\n{name}_poll{idx}:\nbuffer_load_dword v60, v61, s[16:19], s40 offen sc0 sc1\ns_waitcnt vmcnt(0)\nv_cmp_gt_u32 vcc, 16, v60\ns_cbranch_vccnz {name}_poll{idx}\ns_mov_b64 exec, -1")
    A(f"{name}_sb{idx}:\ns_barrier")

def gen_k2(A, part, stamps=False):
    name = part + "_kernel"
    vm = VM(A)
    prologue(A, name, stamps)
    if part == "k2c":
        phase_c(A, vm, name, "", stamps); epilogue(A, name, stamps, 3, 1)
    elif part == "k2d":
        d = PhaseD(A, vm, ""); d.setup_w(); d.setup_h()
        for s in range(4):
            for f in d.issue_w(s) + d.issue_h(s): f()
        d.main(stamps); epilogue(A, name, stamps, 6, 2)
    elif part == "k2e":
        e = PhaseE(A, vm, ""); e.setup_w()
        for f in e.issue_w(0, 60): f()
        vm.wait("WD")
        e.main(stamps); epilogue(A, name, stamps, 8, 3)
    return kd(name, 256, 240, 102), f"; @launch kernel={name} grid=(256,1,1) block=(256,1,1) lds={K2_LDS}"
```

```python
S, D, F = 2048, 640, 1536
WS_V    = 0x0
WS_MOD  = 0x280000
WS_FLAG = 0x284000
WS_WGU  = 0x300000
WS_WD   = 0x700000
WS_H2   = 0x900000
WS_X1   = 0xC00000
WS_G    = 0x1000000
WS_DBG  = 0x1600000
WS_END  = 0x1700000
KA_X, KA_WG, KA_WU, KA_WDN, KA_C, KA_WM, KA_OUT, KA_DBG, KA_WS = 0, 48, 56, 64, 72, 80, 88, 96, 104
def slot_rows(u, p):
    if u >= 1:
        t = u + 64*p; return t, S - t
    if p == 0: return 0, 1024
    if p < 16: return 64*p, S - 64*p
    t = 32 + 64*(p-16); return t, S - t
def rho_to_t():
    r = []
    for u in range(32):
        for p in range(32):
            r += list(slot_rows(u, p))
    return r
```

```python
import sys
from asmlib import *
from layout import *
import k1
def build(parts, stamps=False):
    A = Asm(); kds = []; launches = []
    A('.amdgcn_target "amdgcn-amd-amdhsa--gfx950"\n.text')
    if "k1" in parts:
        kds.append(k1.gen_k1(A, stamps=stamps)); launches.append(f"; @launch kernel=k1_kernel grid=({k1.K1_GRID},1,1) block=(256,1,1) lds={k1.K1_LDS}")
    extra = []
    if any(p.startswith("k2") for p in parts):
        import k2
        for p in parts:
            if p.startswith("k2"):
                d, l = k2.gen_k2(A, p, stamps=stamps); kds.append(d); launches.append(l)
        extra = k2.tables()
    A.L, n = fix_hazards(A.L)
    A.L += extra
    A('.section .rodata,"a"')
    for d in kds: A(d)
    return "\n".join(launches) + "\n" + A.text()
if __name__ == "__main__":
    out = sys.argv[1]; parts = sys.argv[2].split(","); stamps = len(sys.argv) > 3 and sys.argv[3] == "stamps"
    open(out, "w").write(build(parts, stamps))
```
